```python
import torch

def _softmax(x, axis=-1):
    return torch.softmax(x, dim=axis)
def _gelu(x):
    return torch.nn.functional.gelu(x, approximate="tanh")
def _silu(x):
    return torch.nn.functional.silu(x)
def _sigmoid(x):
    return torch.sigmoid(x)
def _layernorm(x, axis=-1, eps=1e-5):
    m = x.mean(dim=axis, keepdim=True)
    v = x.var(dim=axis, keepdim=True, unbiased=False)
    return (x - m) / torch.sqrt(v + eps)
def _scatter_add(tgt, idx, src, axis=0):
    return tgt.clone().index_add_(axis, idx, src)
def _segment_sum(src, seg, n):
    out = torch.zeros((n,) + src.shape[1:], dtype=src.dtype)
    return out.index_add_(0, seg, src)
def _pad(x, pw):
    flat = tuple(v for pair in reversed(pw) for v in pair)
    return torch.nn.functional.pad(x, flat)

kernel_name = 'sequential_preLN__ssm_conv_s4d__glu_gated_geglu__prompt'

def setup_inputs():

    _w = (lambda a: (lambda t: t.to(torch.bfloat16) if t.is_floating_point() else t)(torch.as_tensor(a)))
    def _A_setup():
        Bsz, L, D, N = 1, 2048, 512, 128
        return {
            "u": _w((lambda *s: torch.randn(*s, dtype=torch.bfloat16) * 0.05)(Bsz, L, D)),
            "log_A_real": _w((lambda *s: torch.randn(*s, dtype=torch.bfloat16) * 6.4)(D, N) * 0.5),
            "A_imag": _w((lambda *s: torch.randn(*s, dtype=torch.bfloat16) * 0.05)(D, N) * 3.14),
            "C_real": _w((lambda *s: torch.randn(*s, dtype=torch.bfloat16) * 0.05)(D, N) / N ** 0.5),
            "C_imag": _w((lambda *s: torch.randn(*s, dtype=torch.bfloat16) * 0.05)(D, N) / N ** 0.5),
            "log_dt": _w((lambda *s: torch.randn(*s, dtype=torch.bfloat16) * 0.05)(D) * 0.5 - 4.0),
            "D_skip": _w((lambda *s: torch.randn(*s, dtype=torch.bfloat16) * 0.05)(D)),
        }
    _A_in = _A_setup()

    def _B_setup():
        B, S, Dm, Df = 1, 2048, 512, 1792
        return {
            "x": _w((lambda *s: torch.randn(*s, dtype=torch.bfloat16) * 0.05)(B, S, Dm)),
            "w_gate": _w((lambda *s: torch.randn(*s, dtype=torch.bfloat16) * 0.4)(Dm, Df) * (Dm ** -0.5)),
            "w_up": _w((lambda *s: torch.randn(*s, dtype=torch.bfloat16) * 0.4)(Dm, Df) * (Dm ** -0.5)),
            "w_down": _w((lambda *s: torch.randn(*s, dtype=torch.bfloat16) * 0.4)(Df, Dm) * (Df ** -0.5)),
        }
    _B_in = _B_setup()

    return {
        "A_u": _A_in["u"],
        "A_log_A_real": _A_in["log_A_real"],
        "A_A_imag": _A_in["A_imag"],
        "A_C_real": _A_in["C_real"],
        "A_C_imag": _A_in["C_imag"],
        "A_log_dt": _A_in["log_dt"],
        "A_D_skip": _A_in["D_skip"],
        "B_x": _B_in["x"],
        "B_w_gate": _B_in["w_gate"],
        "B_w_up": _B_in["w_up"],
        "B_w_down": _B_in["w_down"],
    }

def reference(A_u, A_log_A_real, A_A_imag, A_C_real, A_C_imag, A_log_dt, A_D_skip, B_x, B_w_gate, B_w_up, B_w_down):
    def _A_ref(u, log_A_real, A_imag, C_real, C_imag, log_dt, D_skip):
        L = u.shape[1]
        dt = torch.exp(log_dt)
        A = -torch.exp(log_A_real) + 1j * A_imag
        C = (C_real + 1j * C_imag) * dt[:, None]
        pos = (lambda x, dt: x.to(dt))(torch.arange(L), log_dt.dtype)
        P = torch.exp((A * dt[:, None])[:, :, None] * pos[None, None, :])
        K = 2.0 * torch.einsum("dn,dnl->dl", C, P).real
        L2 = 2 * L
        u_t = (lambda x, *d: x.permute(*d))(u, 0, 2, 1)
        Kf = (lambda x, *a, **k: torch.fft.rfft(x.float(), *a, **k))(K, L2)
        Uf = (lambda x, *a, **k: torch.fft.rfft(x.float(), *a, **k))(u_t, L2)
        y = (lambda x, *a, **k: torch.fft.irfft(x, *a, **k).to(torch.bfloat16))(Uf * Kf[None, :, :], L2)[:, :, :L]
        y = (lambda x, *d: x.permute(*d))(y, 0, 2, 1)
        return y + u * D_skip[None, None, :]

    def _B_ref(x, w_gate, w_up, w_down):
        g = torch.einsum("bsd,df->bsf", x, w_gate)
        u = torch.einsum("bsd,df->bsf", x, w_up)
        h = _gelu(g) * u
        return torch.einsum("bsf,fd->bsd", h, w_down)

    x = A_u
    h = x + _A_ref(_layernorm(x, axis=-1), A_log_A_real, A_A_imag, A_C_real, A_C_imag, A_log_dt, A_D_skip)
    h2 = h + _B_ref(_layernorm(h, axis=-1), B_w_gate, B_w_up, B_w_down)
    return h2
```

```python
import re
import struct

TRANS = ("v_exp_f32", "v_log_f32", "v_rcp_f32", "v_rsq_f32", "v_sqrt_f32", "v_sin_f32", "v_cos_f32",
         "v_rcp_iflag_f32")


def f32bits(x):
    return struct.unpack("<I", struct.pack("<f", x))[0]


def hexf(x):
    return "0x%08x" % f32bits(x)


_reg_re = re.compile(r"\b([vsa])(\d+)\b|\b([vsa])\[(\d+):(\d+)\]|\b(vcc|exec|m0|scc)\b")


def regs_of(text):
    out = set()
    for m in _reg_re.finditer(text):
        if m.group(1):
            out.add((m.group(1), int(m.group(2))))
        elif m.group(3):
            for i in range(int(m.group(4)), int(m.group(5)) + 1):
                out.add((m.group(3), i))
        else:
            out.add((m.group(6), 0))
    return out


def split_ops(s):
    ops, depth, cur = [], 0, ""
    for ch in s:
        if ch == "[":
            depth += 1
        if ch == "]":
            depth -= 1
        if ch == "," and depth == 0:
            ops.append(cur.strip())
            cur = ""
        else:
            cur += ch
    if cur.strip():
        ops.append(cur.strip())
    return ops


class Ins:
    def __init__(self, text):
        self.text = text
        t = text.split(";")[0].strip()
        parts = t.split(None, 1)
        self.op = parts[0]
        rest = parts[1] if len(parts) > 1 else ""
        self.ops = split_ops(rest)
        op = self.op
        self.is_mfma = op.startswith("v_mfma")
        self.is_valu = op.startswith("v_") and not self.is_mfma
        self.is_salu = op.startswith("s_")
        self.is_vmem = op.startswith(("buffer_", "global_", "flat_"))
        self.is_ds = op.startswith("ds_")
        self.is_trans = op.replace("_e32", "").replace("_e64", "") in TRANS
        self.is_dpp = "_dpp" in op or "row_" in rest or "quad_perm" in rest or "wave_" in rest
        self.is_lds_dma = self.is_vmem and re.search(r"\blds\b", rest) is not None
        self.is_permlane = op.startswith("v_permlane")
        self.is_readlane = op.startswith(("v_readlane", "v_readfirstlane"))
        self.writes, self.reads = set(), set()
        self.srcc = set()
        self.passes = 0
        o = self.ops
        if self.is_mfma:
            self.writes = regs_of(o[0])
            self.reads = regs_of(o[1]) | regs_of(o[2]) | regs_of(o[3])
            self.srcab = regs_of(o[1]) | regs_of(o[2])
            self.srcc = regs_of(o[3])
            self.passes = 8 if "32x32" in op else 4
        elif self.is_valu:
            if op.startswith("v_nop"):
                pass
            elif self.is_permlane:
                self.writes = regs_of(o[0]) | regs_of(o[1])
                self.reads = set(self.writes)
            elif op.startswith(("v_add_co", "v_sub_co", "v_addc_co", "v_subb_co", "v_subrev_co")):
                self.writes = regs_of(o[0]) | regs_of(o[1])
                self.reads = set().union(*[regs_of(x) for x in o[2:]])
            else:
                self.writes = regs_of(o[0])
                self.reads = set().union(*[regs_of(x) for x in o[1:]]) if len(o) > 1 else set()
                if op.startswith(("v_fmac", "v_dot2c", "v_pk_fmac")) or self.is_dpp:
                    self.reads |= self.writes
        elif self.is_vmem:
            if "store" in op or self.is_lds_dma or op.startswith(("buffer_wbl2", "buffer_inv")):
                self.reads = set().union(*[regs_of(x) for x in o]) if o else set()
                if self.is_lds_dma:
                    self.reads.add(("m0", 0))
            elif "atomic" in op:
                self.reads = set().union(*[regs_of(x) for x in o])
                if "sc0" in rest:
                    self.writes = regs_of(o[0])
            else:
                self.writes = regs_of(o[0])
                self.reads = set().union(*[regs_of(x) for x in o[1:]])
        elif self.is_ds:
            if op.startswith(("ds_write", "ds_add", "ds_max", "ds_min")) and "rtn" not in op:
                self.reads = set().union(*[regs_of(x) for x in o])
            else:
                self.writes = regs_of(o[0])
                self.reads = set().union(*[regs_of(x) for x in o[1:]])
        elif self.is_salu:
            if op.startswith(("s_cmp", "s_waitcnt", "s_barrier", "s_nop", "s_branch", "s_cbranch", "s_endpgm",
                              "s_setprio", "s_sleep", "s_bitcmp")):
                self.reads = set().union(*[regs_of(x) for x in o]) if o else set()
            else:
                self.writes = regs_of(o[0]) if o else set()
                self.reads = set().union(*[regs_of(x) for x in o[1:]]) if len(o) > 1 else set()
                if "saveexec" in op:
                    self.writes.add(("exec", 0))
        self.wide_store = self.is_vmem and "store" in op and ("x4" in op or "x3" in op)
        self.store_data = regs_of(o[0]) if (self.wide_store and op.startswith("buffer")) else (
            regs_of(o[1]) if self.wide_store else set())

    def states(self):
        if self.op == "s_nop":
            return int(self.ops[0], 0) + 1
        return 1


def need(prev, cur):
    n = 0
    pw = prev.writes
    vw = {r for r in pw if r[0] in "va"}
    sw = {r for r in pw if r[0] == "s" or r[0] == "vcc"}
    if prev.is_valu:
        if cur.is_mfma and (vw & cur.reads):
            n = max(n, 2)
        if prev.is_trans and (vw & (cur.reads | cur.writes)) and not cur.is_salu:
            n = max(n, 1)
        if cur.is_valu and cur.is_dpp and (vw & cur.reads):
            n = max(n, 2)
        if cur.is_permlane and (vw & cur.reads):
            n = max(n, 2)
        if cur.is_readlane and (vw & cur.reads):
            n = max(n, 1)
        if sw:
            if cur.is_valu and (sw & cur.reads):
                n = max(n, 4 if cur.is_readlane or cur.op.startswith("v_writelane") else 2)
            if cur.is_vmem and (sw & cur.reads):
                n = max(n, 5)
            if cur.is_salu and (sw & cur.reads):
                n = max(n, 2)
        if "sdwa" in prev.op or "op_sel" in prev.text:
            if cur.is_valu and (vw & (cur.reads | cur.writes)) and not prev.op.startswith("v_pk_"):
                n = max(n, 1)
        if prev.op.startswith("v_dot") and (vw & (cur.reads | cur.writes)):
            same_c = cur.op == prev.op and not (
                vw & set().union(*[regs_of(x) for x in cur.ops[1:3]]))
            if not same_c and not cur.is_salu:
                n = max(n, 3)
    if prev.is_mfma:
        p = prev.passes
        full = {4: 8, 8: 12}[p]
        if cur.is_mfma:
            if vw & cur.srcab:
                n = max(n, full)
            if vw & cur.srcc:
                if not (cur.srcc == vw and cur.passes == p):
                    n = max(n, {4: 6, 8: 10}[p])
            elif vw & cur.writes:
                n = max(n, full)
        elif (cur.is_valu or cur.is_vmem or cur.is_ds) and (vw & (cur.reads | cur.writes)):
            n = max(n, full)
        if cur.is_valu and (prev.srcc & cur.writes):
            n = max(n, {4: 3, 8: 7}[p])
    if prev.is_salu and ("m0", 0) in pw and cur.is_lds_dma:
        n = max(n, 1)
    if prev.wide_store and (prev.store_data & cur.writes):
        n = max(n, 2)
    return n


class Asm:
    def __init__(self):
        self.lines = []
        self.hist = []
        self.nlabel = 0

    def raw(self, s):
        self.lines.append(s)

    def comment(self, s):
        self.lines.append("    ; " + s)

    def label(self, name):
        self.flush()
        self.lines.append(name + ":")

    def flush(self):
        worst = 0
        dist = 0
        for p in reversed(self.hist):
            lim = 0
            if p.is_mfma:
                lim = 12 if p.passes == 8 else 8
            elif p.is_valu:
                lim = 5 if any(r[0] in ("s", "vcc") for r in p.writes) else 3
            elif p.wide_store:
                lim = 2
            elif p.is_salu and ("m0", 0) in p.writes:
                lim = 1
            worst = max(worst, lim - dist)
            dist += p.states()
            if dist > 12:
                break
        if worst > 0:
            self._emit(Ins("s_nop %d" % (worst - 1)))
        self.hist = []

    def _emit(self, ins):
        self.lines.append("    " + ins.text)
        self.hist.append(ins)
        if len(self.hist) > 24:
            self.hist = self.hist[-24:]

    def __call__(self, text):
        for t in text.strip().split("\n"):
            t = t.strip()
            if not t or t.startswith(";"):
                continue
            ins = Ins(t)
            if ins.op.startswith(("s_branch", "s_cbranch")):
                self.flush()
            dist = 0
            pad = 0
            for p in reversed(self.hist):
                n = need(p, ins)
                if n - dist > pad:
                    pad = n - dist
                dist += p.states()
                if dist > 12:
                    break
            if pad > 0:
                self._emit(Ins("s_nop %d" % (pad - 1)))
            self._emit(ins)
            if ins.op.startswith(("s_branch", "s_cbranch")):
                pass

    def new_label(self, base="L"):
        self.nlabel += 1
        return "%s_%d" % (base, self.nlabel)

    def text(self):
        return "\n".join(self.lines) + "\n"
```

```python
import math, sys
sys.path.insert(0, "dev")
from asmgen import Asm, hexf, f32bits
import numpy as np

NAME = "sequential_preLN__ssm_conv_s4d__glu_gated_geglu__prompt"
WS_UT = 0x000000
WS_XT = 0x200000
WS_KR = 0x400000
KR_CH = 8320
KR_COPY = 4160
WS_SC = 0x820000
WS_CW = 0x821000
WS_HT = 0x900000
WS_HH = 0xB00000
WS_WD = 0x1300000
WS_SIZE = 0x10000000

LOG2E = 1.4426950408889634
L2E_HI = float(np.float32(round(LOG2E * 2**15) / 2**15))
L2E_LO = LOG2E - L2E_HI
INV2PI = 0.15915494309189535
C_HI = 163.0 / 1024.0
C_LO = INV2PI - C_HI


def srd(a, s, lo, hi, size):
    a(f"s_mov_b32 s{s}, s{lo}")
    a(f"s_and_b32 s{s+1}, s{hi}, 0xffff")
    a(f"s_mov_b32 s{s+2}, {size}")
    a(f"s_mov_b32 s{s+3}, 0x00020000")


def srd_off(a, s, lo, hi, off, size):
    a(f"s_add_u32 s{s}, s{lo}, {off}")
    a(f"s_addc_u32 s{s+1}, s{hi}, 0")
    a(f"s_and_b32 s{s+1}, s{s+1}, 0xffff")
    a(f"s_mov_b32 s{s+2}, {size}")
    a(f"s_mov_b32 s{s+3}, 0x00020000")


def load_kernargs(a):
    a("s_load_dwordx16 s[16:31], s[0:1], 0")
    a("s_load_dwordx8 s[32:39], s[0:1], 64")
    a("s_load_dwordx4 s[40:43], s[0:1], 96")


def wave_sum(a, v, sdst):
    a(f"v_add_f32_dpp v{v}, v{v}, v{v} quad_perm:[1,0,3,2] row_mask:0xf bank_mask:0xf")
    a(f"v_add_f32_dpp v{v}, v{v}, v{v} quad_perm:[2,3,0,1] row_mask:0xf bank_mask:0xf")
    a(f"v_add_f32_dpp v{v}, v{v}, v{v} row_half_mirror row_mask:0xf bank_mask:0xf")
    a(f"v_add_f32_dpp v{v}, v{v}, v{v} row_mirror row_mask:0xf bank_mask:0xf")
    a(f"v_add_f32_dpp v{v}, v{v}, v{v} row_bcast:15 row_mask:0xa bank_mask:0xf")
    a(f"v_add_f32_dpp v{v}, v{v}, v{v} row_bcast:31 row_mask:0xc bank_mask:0xf")
    a(f"v_readlane_b32 s{sdst}, v{v}, 63")


def rne_bf16(a, v):
    a(f"v_cvt_pk_bf16_f32 v{v}, v{v}, v{v}")
    a(f"v_lshlrev_b32 v{v}, 16, v{v}")


def unpack_bf16(a, src, lo, hi):
    a(f"v_and_b32 v{hi}, 0xffff0000, v{src}")
    a(f"v_lshlrev_b32 v{lo}, 16, v{src}")


def exp_acc(a, d, x, t0, t1):
    a(f"v_mul_f32 v{t0}, {hexf(L2E_HI)}, v{x}")
    a(f"v_rndne_f32 v{t1}, v{t0}")
    a(f"v_sub_f32 v{t0}, v{t0}, v{t1}")
    a(f"v_fmamk_f32 v{t0}, v{x}, {hexf(L2E_LO)}, v{t0}")
    a(f"v_exp_f32 v{t0}, v{t0}")
    a(f"v_cvt_i32_f32 v{t1}, v{t1}")
    a(f"v_ldexp_f32 v{d}, v{t0}, v{t1}")


def cexp(a, d, z, T, t0, t1):
    a(f"v_mul_f32 v{t0}, {hexf(T * float(np.float32(LOG2E)))}, v{z}")
    a(f"v_mul_f32 v{t1}, {hexf(T * C_HI)}, v{z+1}")
    a(f"v_exp_f32 v{t0}, v{t0}")
    a(f"v_fract_f32 v{t1}, v{t1}")
    a(f"v_fmamk_f32 v{t1}, v{z+1}, {hexf(T * float(np.float32(C_LO)))}, v{t1}")
    a(f"v_cos_f32 v{d}, v{t1}")
    a(f"v_sin_f32 v{d+1}, v{t1}")
    a(f"v_mul_f32 v{d}, v{t0}, v{d}")
    a(f"v_mul_f32 v{d+1}, v{t0}, v{d+1}")


def cmul(a, d, x, y):
    assert d != x and d != y
    a(f"v_pk_mul_f32 v[{d}:{d+1}], v[{x}:{x+1}], v[{y}:{y+1}] op_sel:[0,0] op_sel_hi:[0,1]")
    a(f"v_pk_fma_f32 v[{d}:{d+1}], v[{x}:{x+1}], v[{y}:{y+1}], v[{d}:{d+1}] op_sel:[1,1,0] op_sel_hi:[1,0,1] neg_lo:[0,1,0]")


def kernel_header(a, name):
    a.raw(f".globl {name}")
    a.raw(".p2align 8")
    a.raw(f".type {name},@function")
    a.raw(f"{name}:")
    a.hist = []


def kernel_desc(name, vgpr, sgpr, accum=None):
    acc = accum if accum is not None else (vgpr + 3) // 4 * 4
    return f""".p2align 6
.amdhsa_kernel {name}
  .amdhsa_next_free_vgpr {vgpr}
  .amdhsa_next_free_sgpr {sgpr}
  .amdhsa_accum_offset {acc}
  .amdhsa_group_segment_fixed_size 0
  .amdhsa_kernarg_size 112
  .amdhsa_user_sgpr_count 2
  .amdhsa_user_sgpr_kernarg_segment_ptr 1
  .amdhsa_system_sgpr_workgroup_id_x 1
  .amdhsa_float_denorm_mode_32 3
  .amdhsa_float_denorm_mode_16_64 3
.end_amdhsa_kernel
"""

E_ROW = 544
E_T0, E_T1, E_T2, E_TB = 0, 8704, 17408, 22304
E_CH = 31008
K1_U = 62016
K1_X = 70208
K1_T = 78400
K1_TCH = 1600
K1_LDS = 81600
K1_GRID = 256 + 56 + 56


def gen_k1(a):
    name = "k1_prep_kernel"
    kernel_header(a, name)
    load_kernargs(a)
    a("v_lshrrev_b32 v1, 6, v0")
    a("v_and_b32 v2, 63, v0")
    a("v_readfirstlane_b32 s3, v1")
    a(f"s_cmp_ge_u32 s2, {K1_GRID}")
    a("s_cbranch_scc1 K1_END")
    a("s_cmp_ge_u32 s2, 312")
    a("s_cbranch_scc1 K1_WD")
    a("s_cmp_ge_u32 s2, 256")
    a("s_cbranch_scc1 K1_CS")
    a("s_and_b32 s4, s2, 7")
    a("s_lshl_b32 s4, s4, 5")
    a("s_lshr_b32 s5, s2, 3")
    a("s_add_u32 s4, s4, s5")
    a("s_lshl_b32 s5, s4, 3")
    a("s_add_u32 s5, s5, s3")
    a("s_lshl_b32 s5, s5, 10")
    a("s_lshr_b32 s8, s3, 2")
    a("s_lshl_b32 s7, s2, 1")
    a("s_add_u32 s6, s8, s7")
    a("s_lshl_b32 s7, s6, 8")
    a("s_and_b32 s9, s3, 3")
    a("v_lshlrev_b32 v3, 4, v2")
    a("v_lshlrev_b32 v4, 2, v2")
    a("s_lshl_b32 s10, s6, 1")
    a("v_mov_b32 v5, s10")
    a("s_waitcnt lgkmcnt(0)")
    srd(a, 44, 16, 17, 2097152)
    srd(a, 48, 18, 19, 131072)
    srd(a, 52, 20, 21, 131072)
    srd(a, 56, 22, 23, 131072)
    srd(a, 60, 24, 25, 131072)
    srd(a, 64, 26, 27, 1024)
    srd(a, 68, 42, 43, WS_SIZE)
    a("buffer_load_dword v12, v4, s[48:51], s7 offen")
    a("buffer_load_ushort v16, v5, s[64:67], 0 offen")
    a("buffer_load_dword v13, v4, s[52:55], s7 offen")
    a("buffer_load_dword v14, v4, s[56:59], s7 offen")
    a("buffer_load_dword v15, v4, s[60:63], s7 offen")
    a("buffer_load_dwordx4 v[8:11], v3, s[44:47], s5 offen")
    a("s_waitcnt vmcnt(4)")
    unpack_bf16(a, 12, 40, 41)
    a("v_lshlrev_b32 v42, 16, v16")
    exp_acc(a, 43, 40, 50, 51)
    exp_acc(a, 44, 41, 52, 53)
    exp_acc(a, 45, 42, 54, 55)
    a("v_cvt_pk_bf16_f32 v43, v43, v44")
    rne_bf16(a, 45)
    unpack_bf16(a, 43, 43, 44)
    a("s_waitcnt vmcnt(1)")
    unpack_bf16(a, 13, 46, 47)
    a("v_mul_f32 v20, -v43, v45")
    a("v_mul_f32 v21, v46, v45")
    a("v_mul_f32 v22, -v44, v45")
    a("v_mul_f32 v23, v47, v45")
    unpack_bf16(a, 14, 24, 26)
    unpack_bf16(a, 15, 25, 27)
    for r in (24, 25, 26, 27):
        a(f"v_mul_f32 v{r}, v{r}, v45")
    a("v_add_f32 v48, abs(v24), abs(v25)")
    a("v_add_f32 v49, abs(v26), abs(v27)")
    a("v_add_f32 v48, v48, v49")
    wave_sum(a, 48, 11)
    a("s_max_u32 s11, s11, 0x0d800000")
    a("s_min_u32 s11, s11, 0x71800000")
    a("s_add_u32 s11, s11, 0x00ffffff")
    a("s_and_b32 s11, s11, 0x7f800000")
    a("s_sub_u32 s12, 0x7f800000, s11")
    for r in (24, 25, 26, 27):
        a(f"v_mul_f32 v{r}, s12, v{r}")
    a(f"s_mul_i32 s13, s8, {E_CH}")
    a("v_lshlrev_b32 v6, 3, v2")
    a("v_add_u32 v6, s13, v6")

    def wr(row, tile, A, B, neg):
        n = "-" if neg else ""
        a(f"v_cvt_pk_f16_f32 v60, v{A}, {n}v{A+1}")
        a(f"v_cvt_pk_f16_f32 v61, v{B}, {n}v{B+1}")
        a(f"ds_write_b64 v6, v[60:61] offset:{tile + row * E_ROW}")

    def wr2(row, tile, A, B, neg, alt):
        n = "-" if neg else ""
        t = 60 + 2 * alt
        a(f"v_cvt_pk_f16_f32 v{t}, v{A}, {n}v{A+1}")
        a(f"v_cvt_pk_f16_f32 v{t+1}, v{B}, {n}v{B+1}")
        a(f"ds_write_b64 v6, v[{t}:{t+1}] offset:{tile + row * E_ROW}")

    ZA, ZB, CA, CB = 20, 22, 24, 26
    a("s_cmp_eq_u32 s9, 1")
    a("s_cbranch_scc1 K1_R1")
    a("s_cmp_eq_u32 s9, 2")
    a("s_cbranch_scc1 K1_R2")
    a("s_cmp_eq_u32 s9, 3")
    a("s_cbranch_scc1 K1_R3")
    cexp(a, 70, ZA, 8.0, 50, 51)
    cexp(a, 72, ZB, 8.0, 52, 53)
    a("v_mov_b32 v60, 0x00003c00")
    a("v_mov_b32 v61, 0x00003c00")
    a(f"ds_write_b64 v6, v[60:61] offset:{E_TB}")
    wr2(1, E_TB, 70, 72, False, 1)
    cur = (70, 72)
    bufs = [(74, 76), (78, 80)]
    for j in range(2, 16):
        nx = bufs[j & 1]
        cmul(a, nx[0], cur[0], 70)
        cmul(a, nx[1], cur[1], 72)
        wr2(j, E_TB, nx[0], nx[1], False, j & 1)
        cur = nx
    a("s_branch K1_RDONE")
    a.label("K1_R1")
    cexp(a, 70, ZA, 1.0, 50, 51)
    cexp(a, 72, ZB, 1.0, 52, 53)
    cexp(a, 82, ZA, 128.0, 54, 55)
    cexp(a, 84, ZB, 128.0, 56, 57)
    a("s_lshl_b32 s14, s6, 2")
    a(f"s_add_u32 s14, s14, {WS_SC}")
    a("v_mov_b32 v58, s11")
    a("v_mov_b32 v59, 0")
    a("buffer_store_dword v58, v59, s[68:71], s14 offen")
    wr2(0, E_T0, CA, CB, True, 0)
    cur = (CA, CB)
    k = 0
    for i in range(1, 16):
        nx = bufs[k & 1]; k += 1
        if i == 8:
            cmul(a, nx[0], CA, 82); cmul(a, nx[1], CB, 84)
        else:
            cmul(a, nx[0], cur[0], 70); cmul(a, nx[1], cur[1], 72)
        wr2(i, E_T0, nx[0], nx[1], True, i & 1)
        cur = nx
    a("s_branch K1_RDONE")
    a.label("K1_R2")
    cexp(a, 70, ZA, 2.0, 50, 51)
    cexp(a, 72, ZB, 2.0, 52, 53)
    cexp(a, 82, ZA, 128.0, 54, 55)
    cexp(a, 84, ZB, 128.0, 56, 57)
    cexp(a, 86, ZA, 256.0, 50, 51)
    cexp(a, 88, ZB, 256.0, 52, 53)
    cmul(a, 90, 70, 70); cmul(a, 92, 72, 72)
    P = [(94, 96), (98, 100)]
    pk = 0
    cmul(a, P[0][0], CA, 86); cmul(a, P[0][1], CB, 88)
    row = 0
    for I in (2, 3):
        if I == 3:
            cmul(a, P[1][0], P[0][0], 82); cmul(a, P[1][1], P[0][1], 84)
            pk = 1
        wr2(row, E_T1, P[pk][0], P[pk][1], True, row & 1); row += 1
        cur = P[pk]
        for h in range(3):
            nx = bufs[h & 1]
            cmul(a, nx[0], cur[0], 70); cmul(a, nx[1], cur[1], 72)
            wr2(row, E_T1, nx[0], nx[1], True, row & 1); row += 1
            cur = nx
    for I in (4, 5, 6, 7):
        cmul(a, P[pk ^ 1][0], P[pk][0], 82); cmul(a, P[pk ^ 1][1], P[pk][1], 84)
        pk ^= 1
        wr2(row, E_T1, P[pk][0], P[pk][1], True, row & 1); row += 1
        nx = bufs[I & 1]
        cmul(a, nx[0], P[pk][0], 90); cmul(a, nx[1], P[pk][1], 92)
        wr2(row, E_T1, nx[0], nx[1], True, row & 1); row += 1
    a("s_branch K1_RDONE")
    a.label("K1_R3")
    cexp(a, 82, ZA, 128.0, 54, 55)
    cexp(a, 84, ZB, 128.0, 56, 57)
    cexp(a, 86, ZA, 1024.0, 50, 51)
    cexp(a, 88, ZB, 1024.0, 52, 53)
    cmul(a, bufs[0][0], CA, 86); cmul(a, bufs[0][1], CB, 88)
    wr2(0, E_T2, bufs[0][0], bufs[0][1], True, 0)
    for i in range(1, 9):
        cmul(a, bufs[i & 1][0], bufs[(i & 1) ^ 1][0], 82); cmul(a, bufs[i & 1][1], bufs[(i & 1) ^ 1][1], 84)
        wr2(i, E_T2, bufs[i & 1][0], bufs[i & 1][1], True, i & 1)
    a.label("K1_RDONE")
    a("s_waitcnt vmcnt(0)")
    X = list(range(30, 38))
    for i in range(4):
        unpack_bf16(a, 8 + i, X[2 * i], X[2 * i + 1])
    a(f"v_add_f32 v40, v{X[0]}, v{X[1]}")
    a(f"v_add_f32 v41, v{X[2]}, v{X[3]}")
    a(f"v_add_f32 v42, v{X[4]}, v{X[5]}")
    a(f"v_add_f32 v43, v{X[6]}, v{X[7]}")
    a("v_add_f32 v40, v40, v41")
    a("v_add_f32 v42, v42, v43")
    a("v_add_f32 v40, v40, v42")
    wave_sum(a, 40, 14)
    a("v_mov_b32 v41, s14")
    a(f"v_mul_f32 v41, {hexf(1.0/512)}, v41")
    for i in range(8):
        a(f"v_sub_f32 v{44+i}, v{X[i]}, v41")
    a("v_mul_f32 v40, v44, v44")
    a("v_mul_f32 v42, v45, v45")
    for i in range(2, 8, 2):
        a(f"v_fmac_f32 v40, v{44+i}, v{44+i}")
        a(f"v_fmac_f32 v42, v{45+i}, v{45+i}")
    a("v_add_f32 v40, v40, v42")
    wave_sum(a, 40, 15)
    a("v_mov_b32 v42, s15")
    a(f"v_mul_f32 v42, {hexf(1.0/512)}, v42")
    rne_bf16(a, 41)
    rne_bf16(a, 42)
    a(f"v_add_f32 v42, {hexf(1e-5)}, v42")
    rne_bf16(a, 42)
    a("v_sqrt_f32 v42, v42")
    rne_bf16(a, 42)
    a("v_rcp_f32 v43, v42")
    for i in range(8):
        a(f"v_sub_f32 v{44+i}, v{X[i]}, v41")
    for i in range(4):
        a(f"v_cvt_pk_bf16_f32 v{52+i}, v{44+2*i}, v{45+2*i}")
    for i in range(4):
        unpack_bf16(a, 52 + i, 44 + 2 * i, 45 + 2 * i)
    for i in range(8):
        a(f"v_mul_f32 v{X[i]}, v{44+i}, v43")
    for i in range(8):
        a(f"v_fma_f32 v{44+i}, -v{X[i]}, v42, v{44+i}")
    for i in range(8):
        a(f"v_fmac_f32 v{X[i]}, v{44+i}, v43")
    for i in range(4):
        a(f"v_cvt_pk_bf16_f32 v{52+i}, v{X[2*i]}, v{X[2*i+1]}")
    for i in range(4):
        unpack_bf16(a, 52 + i, X[2 * i], X[2 * i + 1])
    for i in range(4):
        a(f"v_cvt_pk_f16_f32 v{52+i}, v{X[2*i]}, v{X[2*i+1]}")
    a("s_lshl_b32 s14, s3, 10")
    a("v_add_u32 v7, s14, v3")
    a(f"ds_write_b128 v7, v[52:55] offset:{K1_U}")
    a(f"v_add_u32 v7, {K1_X}, v7")
    a("ds_write_b128 v7, v[8:11]")
    a("v_mov_b32 v56, 0")
    a(f"v_mul_u32_u24 v57, {K1_TCH}, v0")
    a(f"v_add_u32 v57, {K1_T + 12}, v57")
    a("v_cmp_gt_u32 vcc, 2, v0")
    a("s_and_saveexec_b64 s[72:73], vcc")
    a("ds_write_b32 v57, v56")
    a("s_mov_b64 exec, s[72:73]")
    a("s_waitcnt lgkmcnt(0)")
    a("s_barrier")
    a("v_lshrrev_b32 v40, 4, v0")
    a("v_lshlrev_b32 v40, 5, v40")
    a("v_and_b32 v41, 3, v0")
    a("v_lshl_add_u32 v40, v41, 3, v40")
    a("v_bfe_u32 v41, v0, 2, 2")
    a("v_lshl_add_u32 v40, v41, 10, v40")
    a(f"v_add_u32 v41, {K1_X}, v40")
    a(f"ds_read_b64_tr_b16 v[44:45], v40 offset:{K1_U}")
    a(f"v_add_u32 v42, {K1_U}, v40")
    a("ds_read_b64_tr_b16 v[46:47], v42 offset:4096")
    a("ds_read_b64_tr_b16 v[48:49], v41")
    a("ds_read_b64_tr_b16 v[50:51], v41 offset:4096")
    a("v_lshlrev_b32 v43, 12, v0")
    a("s_lshl_b32 s14, s4, 4")
    a(f"s_add_u32 s15, s14, {WS_XT}")
    a("s_cmp_ge_u32 s3, 3")
    a("s_cselect_b32 s8, 1, 0")
    a("s_mul_i32 s10, s8, 3")
    a("s_sub_u32 s9, s3, s10")
    a("v_and_b32 v52, 15, v2")
    a("v_lshrrev_b32 v53, 4, v2")
    a(f"v_mul_u32_u24 v54, {E_ROW}, v52")
    a("v_lshl_add_u32 v54, v53, 4, v54")
    a(f"s_mul_i32 s13, s8, {E_CH}")
    a(f"s_mul_i32 s10, s9, {E_T1}")
    a("s_add_u32 s10, s10, s13")
    a("v_add_u32 v55, s10, v54")
    a(f"s_add_u32 s10, s13, {E_TB}")
    a("v_add_u32 v56, s10, v54")
    a("s_waitcnt lgkmcnt(2)")
    a("buffer_store_dwordx4 v[44:47], v43, s[68:71], s14 offen")
    a("s_waitcnt lgkmcnt(0)")
    a("buffer_store_dwordx4 v[48:51], v43, s[68:71], s15 offen")
    a("s_cmp_ge_u32 s3, 6")
    a("s_cbranch_scc1 K1_MDONE")
    for ks in range(8):
        a(f"ds_read_b128 v[{64+8*ks}:{67+8*ks}], v55 offset:{64*ks}")
        a(f"ds_read_b128 v[{68+8*ks}:{71+8*ks}], v56 offset:{64*ks}")
    for ks in range(8):
        a(f"s_waitcnt lgkmcnt({min(15, 14 - 2*ks)})")
        c = "0" if ks == 0 else "v[60:63]"
        a(f"v_mfma_f32_16x16x32_f16 v[60:63], v[{64+8*ks}:{67+8*ks}], v[{68+8*ks}:{71+8*ks}], {c}")
    a("v_cvt_pk_f16_f32 v58, v60, v61")
    a("v_cvt_pk_f16_f32 v59, v62, v63")
    a(f"s_mul_i32 s13, s8, {K1_TCH}")
    a(f"s_add_u32 s13, s13, {K1_T + 16}")
    a("s_cmp_eq_u32 s9, 1")
    a("s_cbranch_scc1 K1_T1")
    a("s_cmp_eq_u32 s9, 2")
    a("s_cbranch_scc1 K1_T2")
    a("v_lshrrev_b32 v54, 1, v53")
    a("v_lshlrev_b32 v54, 8, v54")
    a("v_and_b32 v55, 1, v53")
    a("v_lshl_add_u32 v54, v55, 3, v54")
    a("v_lshl_add_u32 v54, v52, 4, v54")
    a("v_add_u32 v54, s13, v54")
    a("ds_write_b64 v54, v[58:59]")
    a("s_branch K1_MDONE")
    a.label("K1_T1")
    a("v_cmp_gt_u32 vcc, 2, v53")
    a("v_lshlrev_b32 v54, 3, v52")
    a("v_lshlrev_b32 v55, 2, v52")
    a("v_cndmask_b32 v54, v55, v54, vcc")
    a("v_lshl_add_u32 v54, v53, 7, v54")
    a("v_add_u32 v54, s13, v54")
    a("v_mov_b32 v55, 64")
    a("v_cndmask_b32 v55, v55, 4, vcc")
    a("v_add_u32 v55, v54, v55")
    a("ds_write_b32 v54, v58 offset:512")
    a("ds_write_b32 v55, v59 offset:512")
    a("s_branch K1_MDONE")
    a.label("K1_T2")
    a("v_lshlrev_b32 v54, 1, v52")
    a("v_lshl_add_u32 v54, v53, 7, v54")
    a("v_add_u32 v54, s13, v54")
    a("ds_write_b16 v54, v58 offset:1024")
    a("ds_write_b16_d16_hi v54, v58 offset:1056")
    a("ds_write_b16 v54, v59 offset:1088")
    a("ds_write_b16_d16_hi v54, v59 offset:1120")
    a.label("K1_MDONE")
    a("v_lshrrev_b32 v40, 8, v0")
    a("v_and_b32 v41, 255, v0")
    a("v_lshl_add_u32 v42, v41, 3, v40")
    a("v_sub_u32 v42, 2047, v42")
    J = list(range(64, 72)); F = list(range(72, 80))
    for e in range(8):
        a(f"v_subrev_u32 v{J[e]}, {e}, v42")
    for e in range(8):
        a(f"v_max_i32 v{F[e]}, 0, v{J[e]}")
    for e in range(8):
        a(f"v_cvt_f32_u32 v{F[e]}, v{F[e]}")
    for e in range(0, 8, 2):
        a(f"v_cvt_pk_bf16_f32 v{80+e//2}, v{F[e]}, v{F[e+1]}")
    for e in range(0, 8, 2):
        a(f"v_and_b32 v{F[e]}, 0xffff, v{80+e//2}")
        a(f"v_lshrrev_b32 v{F[e+1]}, 16, v{80+e//2}")
    for e in range(8):
        a(f"v_subrev_u32 v{F[e]}, 17024, v{F[e]}")
        a(f"v_min_i32 v{J[e]}, 0x80, v{J[e]}")
    for e in range(8):
        a(f"v_max_i32 v{J[e]}, v{J[e]}, v{F[e]}")
    a(f"v_mov_b32 v43, {K1_T + 16}")
    for e in range(8):
        a(f"v_lshl_add_u32 v{J[e]}, v{J[e]}, 1, v43")
    a(f"v_mul_u32_u24 v44, {KR_COPY}, v40")
    a("v_lshl_add_u32 v44, v41, 4, v44")
    a(f"s_mul_i32 s14, s2, {2*KR_CH}")
    a(f"s_add_u32 s14, s14, {WS_KR}")
    a(f"s_add_u32 s15, s14, {KR_CH}")
    a("s_waitcnt lgkmcnt(0)")
    a("s_barrier")
    for chl in range(2):
        for e in range(8):
            a(f"ds_read_u16 v{84+8*chl+e}, v{J[e]} offset:{chl*K1_TCH}")
    a("s_waitcnt lgkmcnt(8)")
    for e in range(0, 8, 2):
        a(f"v_lshl_or_b32 v{100+e//2}, v{84+e+1}, 16, v{84+e}")
    a("buffer_store_dwordx4 v[100:103], v44, s[68:71], s14 offen")
    a("s_waitcnt lgkmcnt(0)")
    for e in range(0, 8, 2):
        a(f"v_lshl_or_b32 v{104+e//2}, v{92+e+1}, 16, v{92+e}")
    a("buffer_store_dwordx4 v[104:107], v44, s[68:71], s15 offen")
    a("v_mov_b32 v108, 0")
    a("v_mov_b32 v109, 0")
    a("v_mov_b32 v110, 0")
    a("v_mov_b32 v111, 0")
    a(f"v_mul_u32_u24 v45, {KR_COPY}, v0")
    a("v_add_u32 v45, 4096, v45")
    a("v_cmp_gt_u32 vcc, 4, v0")
    a("s_and_saveexec_b64 s[72:73], vcc")
    a("s_cbranch_execz K1_END")
    a("buffer_store_dwordx4 v[108:111], v45, s[68:71], s14 offen")
    a("s_endpgm")
    a.label("K1_CS")
    a("s_sub_u32 s4, s2, 256")
    a("s_cmp_ge_u32 s4, 28")
    a("s_cselect_b32 s5, 1, 0")
    a("s_mul_i32 s6, s5, 28")
    a("s_sub_u32 s6, s4, s6")
    a("s_waitcnt lgkmcnt(0)")
    a("s_cmp_eq_u32 s5, 1")
    a("s_cselect_b32 s8, s34, s32")
    a("s_cselect_b32 s9, s35, s33")
    srd(a, 44, 8, 9, 512 * 3584)
    srd(a, 68, 42, 43, WS_SIZE)
    a("v_and_b32 v3, 7, v0")
    a("v_lshrrev_b32 v4, 3, v0")
    a(f"v_mul_u32_u24 v5, 3584, v4")
    a("v_lshl_add_u32 v5, v3, 4, v5")
    a("s_lshl_b32 s7, s6, 7")
    for p in range(8):
        a(f"buffer_load_dwordx4 v[{8+4*p}:{11+4*p}], v5, s[44:47], s7 offen")
        if p < 7:
            a(f"s_add_u32 s7, s7, {64*3584}")
    for p in range(8):
        a(f"s_waitcnt vmcnt({7-p})")
        for i in range(4):
            if p == 0:
                unpack_bf16(a, 8 + i, 48 + 2 * i, 49 + 2 * i)
            else:
                unpack_bf16(a, 8 + 4 * p + i, 56 + 2 * i, 57 + 2 * i)
        if p:
            for i in range(8):
                a(f"v_add_f32 v{48+i}, v{48+i}, v{56+i}")
    a("v_mul_u32_u24 v6, 272, v4")
    a("v_lshl_add_u32 v6, v3, 5, v6")
    a("ds_write_b128 v6, v[48:51]")
    a("ds_write_b128 v6, v[52:55] offset:16")
    a("s_waitcnt lgkmcnt(0)")
    a("s_barrier")
    a(f"s_mul_i32 s7, s3, {8*272}")
    a("v_lshlrev_b32 v6, 2, v2")
    a("v_add_u32 v7, s7, v6")
    for i in range(8):
        a(f"ds_read_b32 v{8+i}, v7 offset:{272*i}")
    a("s_waitcnt lgkmcnt(0)")
    for i in range(1, 8):
        a(f"v_add_f32 v8, v8, v{8+i}")
    a("s_lshl_b32 s7, s3, 8")
    a("v_add_u32 v7, s7, v6")
    a("ds_write_b32 v7, v8 offset:17408")
    a("s_waitcnt lgkmcnt(0)")
    a("s_barrier")
    a("s_cmp_lg_u32 s3, 0")
    a("s_cbranch_scc1 K1_END")
    for i in range(8):
        a(f"ds_read_b32 v{8+i}, v6 offset:{17408+256*i}")
    a("s_waitcnt lgkmcnt(0)")
    for i in range(1, 8):
        a(f"v_add_f32 v8, v8, v{8+i}")
    a("s_lshl_b32 s7, s4, 8")
    a(f"s_add_u32 s7, s7, {WS_CW}")
    a("buffer_store_dword v8, v6, s[68:71], s7 offen")
    a("s_endpgm")
    a.label("K1_WD")
    a("s_sub_u32 s4, s2, 312")
    a("s_waitcnt lgkmcnt(0)")
    srd(a, 44, 36, 37, 1792 * 1024)
    srd(a, 68, 42, 43, WS_SIZE)
    a("v_lshlrev_b32 v3, 4, v0")
    a("s_lshl_b32 s5, s4, 15")
    for p in range(4):
        a(f"buffer_load_dwordx4 v[{8+4*p}:{11+4*p}], v3, s[44:47], s5 offen")
        if p < 3:
            a("s_add_u32 s5, s5, 8192")
    WP = 1024 + 32
    a(f"v_mul_u32_u24 v4, {WP}, v1")
    a("v_lshl_add_u32 v4, v2, 4, v4")
    for p in range(4):
        a(f"s_waitcnt vmcnt({3-p})")
        a(f"ds_write_b128 v4, v[{8+4*p}:{11+4*p}] offset:{8*WP*p}")
    a("s_waitcnt lgkmcnt(0)")
    a("s_barrier")
    a("v_lshrrev_b32 v5, 4, v2")
    a("v_lshlrev_b32 v5, 3, v5")
    a("v_bfe_u32 v6, v2, 2, 2")
    a("v_add_u32 v5, v5, v6")
    a(f"v_mul_u32_u24 v5, {WP}, v5")
    a("v_and_b32 v6, 3, v2")
    a("v_lshl_add_u32 v5, v6, 5, v5")
    a("s_lshl_b32 s5, s3, 7")
    a("v_add_u32 v5, s5, v5")
    for mt in range(4):
        a(f"ds_read_b64_tr_b16 v[{24+4*mt}:{25+4*mt}], v5 offset:{8*mt}")
        a(f"ds_read_b64_tr_b16 v[{26+4*mt}:{27+4*mt}], v5 offset:{8*mt+4*WP}")
    a("s_mul_i32 s5, s3, 56")
    a("s_add_u32 s5, s5, s4")
    a("s_lshl_b32 s5, s5, 12")
    a(f"s_add_u32 s5, s5, {WS_WD}")
    a("v_lshlrev_b32 v6, 4, v2")
    for mt in range(4):
        a(f"s_waitcnt lgkmcnt({6-2*mt})")
        a(f"buffer_store_dwordx4 v[{24+4*mt}:{27+4*mt}], v6, s[68:71], s5 offen offset:{1024*mt}")
    a.label("K1_END")
    a("s_endpgm")
    return name, 128, 80, (K1_GRID, 512, K1_LDS)


F_COPY = 4160
F_CH = 8 * F_COPY
G_BASE = 2 * F_CH
G_CH = 4608
K2_LDS = G_BASE + 2 * G_CH


def gen_k2(a):
    name = "k2_conv_kernel"
    kernel_header(a, name)
    load_kernargs(a)
    a("v_lshrrev_b32 v1, 6, v0")
    a("v_and_b32 v2, 63, v0")
    a("v_readfirstlane_b32 s3, v1")
    a("s_cmp_ge_u32 s2, 256")
    a("s_cbranch_scc1 K2_END")
    a("v_lshlrev_b32 v3, 4, v2")
    a("s_lshr_b32 s8, s3, 2")
    a("s_and_b32 s9, s3, 3")
    a("s_lshl_b32 s6, s2, 1")
    a("s_add_u32 s6, s6, s8")
    a("s_waitcnt lgkmcnt(0)")
    srd(a, 68, 42, 43, WS_SIZE)
    a("s_lshl_b32 s7, s6, 2")
    a(f"s_add_u32 s7, s7, {WS_SC}")
    a("s_load_dword s44, s[42:43], s7")
    a("s_lshl_b32 s7, s2, 2")
    a("s_load_dword s45, s[28:29], s7")
    a("s_and_b32 s10, s3, 1")
    a(f"s_mul_i32 s10, s10, {KR_COPY}")
    a("s_lshr_b32 s11, s3, 1")
    a("s_lshl_b32 s11, s11, 2")
    a("s_add_u32 s10, s10, s11")
    a(f"s_mul_i32 s11, s2, {2*KR_CH}")
    a("s_add_u32 s10, s10, s11")
    a(f"s_add_u32 s10, s10, {WS_KR}")
    a(f"s_mul_i32 s12, s3, {F_COPY}")
    a("s_lshl_b32 s13, s6, 12")
    a("s_lshl_b32 s14, s9, 10")
    a("s_add_u32 s13, s13, s14")
    a(f"s_mul_i32 s15, s8, {G_CH}")
    a("s_add_u32 s15, s15, s14")
    a(f"s_add_u32 s15, s15, {G_BASE + 512}")
    a("s_mov_b32 m0, s15")
    a("buffer_load_dwordx4 v3, s[68:71], s13 offen lds")
    for chl in range(2):
        a("s_mov_b32 m0, s12")
        for part in range(4):
            a(f"buffer_load_dwordx4 v3, s[68:71], s10 offen offset:{1024*part} lds")
        if chl == 0:
            a(f"s_add_u32 s10, s10, {KR_CH}")
            a(f"s_add_u32 s12, s12, {F_CH}")
    a("v_and_b32 v4, 15, v2")
    a("v_lshrrev_b32 v5, 4, v2")
    a("v_lshlrev_b32 v6, 5, v4")
    a("v_lshl_add_u32 v6, v5, 3, v6")
    a("s_lshl_b32 s13, s6, 12")
    a("s_add_u32 s13, s13, s14")
    a(f"s_add_u32 s46, s13, {WS_XT}")
    a(f"s_add_u32 s47, s13, {WS_HT}")
    a("buffer_load_dwordx2 v[10:11], v6, s[68:71], s46 offen")
    a("buffer_load_dwordx2 v[12:13], v6, s[68:71], s46 offen offset:512")
    for r in range(16, 20):
        a(f"v_mov_b32 v{r}, 0")
    a(f"v_mul_u32_u24 v7, {F_CH}, v2")
    a(f"s_mul_i32 s12, s3, {F_COPY}")
    a("s_add_u32 s12, s12, 4096")
    a("v_add_u32 v7, s12, v7")
    a("v_cmp_gt_u32 vcc, 2, v2")
    a("s_and_saveexec_b64 s[72:73], vcc")
    a("ds_write_b128 v7, v[16:19]")
    a("s_mov_b64 exec, s[72:73]")
    a("s_cmp_lg_u32 s3, 0")
    a("s_cbranch_scc1 K2_Z")
    a("v_lshrrev_b32 v7, 5, v2")
    a(f"v_mul_u32_u24 v7, {G_CH}, v7")
    a("v_and_b32 v8, 31, v2")
    a("v_lshl_add_u32 v7, v8, 4, v7")
    a(f"v_add_u32 v7, {G_BASE}, v7")
    a("ds_write_b128 v7, v[16:19]")
    a.label("K2_Z")
    a("v_and_b32 v7, 7, v4")
    a("v_sub_u32 v7, 7, v7")
    a(f"v_mul_u32_u24 v7, {F_COPY}, v7")
    a("v_lshrrev_b32 v8, 3, v4")
    a("v_sub_u32 v8, v5, v8")
    a("v_lshl_add_u32 v7, v8, 4, v7")
    a(f"s_mul_i32 s12, s8, {F_CH}")
    a("s_lshl_b32 s13, s9, 7")
    a("s_sub_u32 s12, s12, s13")
    a(f"s_add_u32 s12, s12, {4080 - 96 - 3584}")
    a("v_add_u32 v7, s12, v7")
    a("v_lshlrev_b32 v8, 5, v4")
    a("v_lshl_add_u32 v8, v5, 4, v8")
    a(f"s_mul_i32 s12, s8, {G_CH}")
    a("s_sub_u32 s12, s12, s13")
    a(f"s_add_u32 s12, s12, {G_BASE + 512 - 96}")
    a("v_add_u32 v8, s12, v8")
    a("s_waitcnt vmcnt(0) lgkmcnt(0)")
    a("s_barrier")
    ACC = 32
    FR = [64, 128]

    def reads(cls):
        base = FR[cls]
        extra = 64 if cls == 0 else 0
        for i in range(8):
            a(f"ds_read_b128 v[{base+4*i}:{base+4*i+3}], v7 offset:{512*(7-i)+extra}")
            a(f"ds_read_b128 v[{base+32+4*i}:{base+32+4*i+3}], v8 offset:{512*i+extra}")

    def mfmas(cls, first):
        base = FR[cls]
        done = set()
        for sg in range(8):
            for i in range(sg, 8):
                gm = i - sg
                c = "0" if (first and sg == 0) else f"v[{ACC+4*i}:{ACC+4*i+3}]"
                a(f"v_mfma_f32_16x16x32_f16 v[{ACC+4*i}:{ACC+4*i+3}], v[{base+4*sg}:{base+4*sg+3}], v[{base+32+4*gm}:{base+32+4*gm+3}], {c}")
    reads(0)
    a("s_waitcnt lgkmcnt(0)")
    reads(1)
    mfmas(0, True)
    a("s_waitcnt lgkmcnt(0)")
    mfmas(1, False)
    a(f"s_mul_i32 s12, s8, {G_CH}")
    a("s_add_u32 s12, s12, s14")
    a(f"s_add_u32 s12, s12, {G_BASE + 512}")
    a("v_add_u32 v9, s12, v6")
    a("ds_read_b64 v[14:15], v9")
    a("ds_read_b64 v[16:17], v9 offset:512")
    a("s_barrier")
    a("s_lshl_b32 s12, s3, 13")
    a("v_add_u32 v7, s12, v3")
    for t in range(8):
        a(f"ds_write_b128 v7, v[{ACC+4*t}:{ACC+4*t+3}] offset:{1024*t}")
    a("s_waitcnt lgkmcnt(0)")
    a("s_barrier")
    a("s_lshl_b32 s12, s8, 15")
    a("s_lshl_b32 s13, s9, 11")
    a("s_add_u32 s12, s12, s13")
    a("v_add_u32 v7, s12, v3")
    for p in range(4):
        for t in range(2):
            a(f"ds_read_b128 v[{64+8*p+4*t}:{64+8*p+4*t+3}], v7 offset:{8192*p+1024*t}")
    a("s_lshl_b32 s12, s45, 16")
    a("s_and_b32 s13, s45, 0xffff0000")
    a("s_cmp_eq_u32 s8, 0")
    a("s_cselect_b32 s45, s12, s13")
    for i in range(4):
        a(f"v_cvt_f32_f16 v{20+2*i}, v{14+i}")
        a(f"v_lshrrev_b32 v{21+2*i}, 16, v{14+i}")
        a(f"v_cvt_f32_f16 v{21+2*i}, v{21+2*i}")
    for i in range(8):
        a(f"v_mul_f32 v{20+i}, s45, v{20+i}")
    for i in range(4):
        a(f"v_cvt_pk_bf16_f32 v{14+i}, v{20+2*i}, v{21+2*i}")
    for i in range(4):
        unpack_bf16(a, 14 + i, 20 + 2 * i, 21 + 2 * i)
    a("s_waitcnt lgkmcnt(0)")
    for i in range(8):
        a(f"v_add_f32 v{64+i}, v{64+i}, v{72+i}")
        a(f"v_add_f32 v{80+i}, v{80+i}, v{88+i}")
    for i in range(8):
        a(f"v_add_f32 v{64+i}, v{64+i}, v{80+i}")
    for i in range(8):
        a(f"v_mul_f32 v{64+i}, s44, v{64+i}")
    for i in range(4):
        a(f"v_cvt_pk_bf16_f32 v{14+i}, v{64+2*i}, v{65+2*i}")
    for i in range(4):
        unpack_bf16(a, 14 + i, 64 + 2 * i, 65 + 2 * i)
    for i in range(8):
        a(f"v_add_f32 v{64+i}, v{64+i}, v{20+i}")
    for i in range(4):
        a(f"v_cvt_pk_bf16_f32 v{14+i}, v{64+2*i}, v{65+2*i}")
    for i in range(4):
        unpack_bf16(a, 14 + i, 64 + 2 * i, 65 + 2 * i)
        unpack_bf16(a, 10 + i, 20 + 2 * i, 21 + 2 * i)
    for i in range(8):
        a(f"v_add_f32 v{64+i}, v{64+i}, v{20+i}")
    for i in range(4):
        a(f"v_cvt_pk_bf16_f32 v{14+i}, v{64+2*i}, v{65+2*i}")
    a("buffer_store_dwordx2 v[14:15], v6, s[68:71], s47 offen")
    a("buffer_store_dwordx2 v[16:17], v6, s[68:71], s47 offen offset:512")
    a.label("K2_END")
    a("s_endpgm")
    return name, 192, 80, (256, 512, K2_LDS)


K3_NSLOT = 6
K3_SLOT = 24576
K3_STAT = K3_NSLOT * K3_SLOT
K3_LDS = K3_STAT + 1024
GELU_C0 = -2.0 * 0.7978845608028654 * LOG2E
GELU_C1 = GELU_C0 * 0.044715


def gen_k3(a):
    name = "k3_gemm1_kernel"
    kernel_header(a, name)
    load_kernargs(a)
    a("v_lshrrev_b32 v1, 6, v0")
    a("v_and_b32 v2, 63, v0")
    a("v_readfirstlane_b32 s3, v1")
    a("s_cmp_ge_u32 s2, 256")
    a("s_cbranch_scc1 K3_END")
    a("s_and_b32 s4, s2, 7")
    a("s_lshr_b32 s5, s2, 3")
    a("s_and_b32 s6, s4, 1")
    a("s_lshl_b32 s6, s6, 3")
    a("s_and_b32 s7, s5, 7")
    a("s_add_u32 s6, s6, s7")
    a("s_lshr_b32 s7, s4, 1")
    a("s_lshl_b32 s7, s7, 2")
    a("s_lshr_b32 s8, s5, 3")
    a("s_add_u32 s7, s7, s8")
    a("v_lshrrev_b32 v3, 4, v2")
    a("v_and_b32 v4, 15, v2")
    a("s_and_b32 s8, s3, 1")
    a("s_lshl_b32 s8, s8, 2")
    a("v_add_u32 v5, s8, v3")
    a("v_lshlrev_b32 v5, 1, v5")
    a("v_xor_b32 v5, v5, v4")
    a("s_lshl_b32 s8, s3, 2")
    a("v_add_u32 v6, s8, v3")
    a("v_lshlrev_b32 v7, 12, v6")
    a("v_lshl_add_u32 v7, v5, 4, v7")
    a("v_mul_u32_u24 v8, 3584, v6")
    a("v_lshl_add_u32 v8, v5, 4, v8")
    a("v_cmp_gt_u32 vcc, 14, v5")
    a("v_mov_b32 v9, 0x80000000")
    a("v_cndmask_b32 v8, v9, v8, vcc")
    a("s_lshl_b32 s10, s6, 8")
    a("s_mul_i32 s11, s7, 224")
    a("s_lshl_b32 s12, s3, 10")
    a("s_waitcnt lgkmcnt(0)")
    srd_off(a, 44, 42, 43, WS_HT, 512 * 4096)
    srd(a, 48, 32, 33, 512 * 3584)
    srd(a, 52, 34, 35, 512 * 3584)
    srd(a, 68, 42, 43, WS_SIZE)

    def dma(stage):
        slot = stage % K3_NSLOT
        a(f"s_add_u32 m0, s12, {slot*K3_SLOT}")
        a(f"s_add_u32 s13, s10, {stage*32*4096}")
        a("buffer_load_dwordx4 v7, s[44:47], s13 offen lds")
        a(f"s_add_u32 m0, s12, {slot*K3_SLOT + 8192}")
        a(f"s_add_u32 s13, s11, {stage*32*3584}")
        a("buffer_load_dwordx4 v8, s[48:51], s13 offen lds")
        a(f"s_add_u32 m0, s12, {slot*K3_SLOT + 16384}")
        a("buffer_load_dwordx4 v8, s[52:55], s13 offen lds")

    a("v_lshrrev_b32 v10, 2, v4")
    a("v_lshl_add_u32 v10, v3, 2, v10")
    a("v_and_b32 v11, 7, v10")
    a("v_and_b32 v12, 3, v4")
    a("v_lshlrev_b32 v12, 3, v12")
    a("v_lshl_add_u32 v12, v10, 8, v12")
    a("v_lshlrev_b32 v13, 4, v3")
    a("s_mul_i32 s14, s7, 448")
    a(f"s_add_u32 s14, s14, {WS_CW}")
    a(f"s_add_u32 s15, s14, {1792*4}")
    a("s_cmp_ge_u32 s3, 4")
    a("s_cbranch_scc1 K3_B")

    def path(isb):
        nN = 2 if isb else 4
        nT = 3 if isb else 2
        ADDR = 16
        na = nN + nT
        CWR = 36
        ACC = 60
        nacc = 2 * nT * nN * 4
        FR = ACC + nacc
        FR = (FR + 3) // 4 * 4
        ST = FR + 64
        TMP = ST + 8
        if isb:
            a("s_sub_u32 s8, s3, 4")
            a("s_lshl_b32 s8, s8, 1")
            a("s_mov_b32 s9, 4")
        else:
            a("s_and_b32 s8, s3, 1")
            a("s_lshl_b32 s8, s8, 2")
            a("s_lshr_b32 s9, s3, 1")
            a("s_lshl_b32 s9, s9, 1")
        a("s_lshl_b32 s13, s9, 6")
        a("v_add_u32 v14, s13, v13")
        for t in range(nT):
            a(f"buffer_load_dwordx4 v[{CWR+4*t}:{CWR+4*t+3}], v14, s[68:71], s14 offen offset:{64*t}")
            a(f"buffer_load_dwordx4 v[{CWR+4*nT+4*t}:{CWR+4*nT+4*t+3}], v14, s[68:71], s15 offen offset:{64*t}")
        for st in range(K3_NSLOT):
            dma(st)
        for i in range(na):
            if i < nN:
                a(f"s_add_u32 s13, s8, {i}")
            else:
                a(f"s_add_u32 s13, s9, {i-nN}")
            a(f"v_xor_b32 v14, s13, v11")
            a(f"v_lshl_add_u32 v{ADDR+i}, v14, 5, v12")
            a(f"v_add_u32 v{ADDR+na+i}, {2*K3_SLOT}, v{ADDR+i}")
            a(f"v_add_u32 v{ADDR+2*na+i}, {4*K3_SLOT}, v{ADDR+i}")
        if isb:
            for i in range(4):
                a(f"v_mov_b32 v{ST+i}, 0")
            a("s_mov_b32 s56, 0x3f803f80")

        def frag(setn, idx):
            return FR + 32 * setn + 4 * idx

        def read_list(stage):
            slot = stage % K3_NSLOT
            win = slot // 2
            base = (slot % 2) * K3_SLOT
            setn = stage % 2
            lst = []
            for n in range(nN):
                r = frag(setn, n)
                ad = ADDR + win * na + n
                lst.append(f"ds_read_b64_tr_b16 v[{r}:{r+1}], v{ad} offset:{base}")
                lst.append(f"ds_read_b64_tr_b16 v[{r+2}:{r+3}], v{ad} offset:{base+4096}")
            for t in range(nT):
                for gu in range(2):
                    r = frag(setn, nN + 2 * t + gu)
                    ad = ADDR + win * na + nN + t
                    off = base + 8192 * (1 + gu)
                    lst.append(f"ds_read_b64_tr_b16 v[{r}:{r+1}], v{ad} offset:{off}")
                    lst.append(f"ds_read_b64_tr_b16 v[{r+2}:{r+3}], v{ad} offset:{off+4096}")
            return lst

        def acc(gu, t, n):
            return ACC + 4 * ((gu * nT + t) * nN + n)

        def mfma_list(stage):
            setn = stage % 2
            lst = []
            for t in range(nT):
                for gu in range(2):
                    A = frag(setn, nN + 2 * t + gu)
                    for n in range(nN):
                        B = frag(setn, n)
                        d = acc(gu, t, n)
                        c = "0" if stage == 0 else f"v[{d}:{d+3}]"
                        lst.append(f"v_mfma_f32_16x16x32_bf16 v[{d}:{d+3}], v[{A}:{A+3}], v[{B}:{B+3}], {c}")
            return lst

        def stat_list(stage):
            setn = stage % 2
            lst = []
            for n in range(2):
                for r in range(4):
                    v = frag(setn, n) + r
                    lst.append(f"v_dot2c_f32_bf16 v{ST+n}, s56, v{v}")
                    lst.append(f"v_dot2c_f32_bf16 v{ST+2+n}, v{v}, v{v}")
            return lst

        a(f"s_waitcnt vmcnt({3*(K3_NSLOT-1)})")
        a("s_barrier")
        for r in read_list(0):
            a(r)
        a(f"s_waitcnt vmcnt({3*(K3_NSLOT-2)}) lgkmcnt(0)")
        a("s_barrier")
        for s in range(16):
            if s + K3_NSLOT < 16:
                dma(s + K3_NSLOT)
            rl = read_list(s + 1) if s + 1 < 16 else []
            ml = mfma_list(s)
            sl = stat_list(s) if isb else []
            nm = len(ml)
            ri = si = 0
            for i, m in enumerate(ml):
                a(m)
                tgt = (len(rl) * (i + 1) + nm - 1) // nm if rl else 0
                tgt = min(len(rl), (len(rl) * (i + 1) * 4) // (nm * 3) + 1) if rl else 0
                while ri < tgt:
                    a(rl[ri]); ri += 1
                ts = (len(sl) * (i + 1)) // nm
                while si < ts:
                    a(sl[si]); si += 1
            while ri < len(rl):
                a(rl[ri]); ri += 1
            if s < 15:
                last = min(s + K3_NSLOT, 15)
                n = 3 * max(0, last - (s + 2))
                a(f"s_waitcnt vmcnt({n}) lgkmcnt(0)")
                a("s_barrier")
        if isb:
            for i in range(4):
                a(f"v_mov_b32 v{TMP+i}, v{ST+i}")
            for i in range(4):
                a(f"v_permlane32_swap_b32 v{ST+i}, v{TMP+i}")
            for i in range(4):
                a(f"v_add_f32 v{ST+i}, v{ST+i}, v{TMP+i}")
            for i in range(4):
                a(f"v_mov_b32 v{TMP+i}, v{ST+i}")
            for i in range(4):
                a(f"v_permlane16_swap_b32 v{ST+i}, v{TMP+i}")
            for i in range(4):
                a(f"v_add_f32 v{ST+i}, v{ST+i}, v{TMP+i}")
            for n in range(2):
                m, q = ST + n, ST + 2 + n
                a(f"v_mul_f32 v{m}, {hexf(1.0/512)}, v{m}")
                a(f"v_mul_f32 v{q}, {hexf(1.0/512)}, v{q}")
                a(f"v_fma_f32 v{q}, -v{m}, v{m}, v{q}")
                a(f"v_max_f32 v{q}, 0, v{q}")
                rne_bf16(a, m)
                rne_bf16(a, q)
                a(f"v_add_f32 v{q}, {hexf(1e-5)}, v{q}")
                rne_bf16(a, q)
                a(f"v_sqrt_f32 v{q}, v{q}")
                rne_bf16(a, q)
                a(f"v_rcp_f32 v{q}, v{q}")
                a(f"v_mov_b32 v{TMP+2*n}, v{m}")
                a(f"v_mov_b32 v{TMP+2*n+1}, v{q}")
            a("s_lshl_b32 s13, s8, 7")
            a(f"s_add_u32 s13, s13, {K3_STAT}")
            a("v_lshlrev_b32 v14, 3, v4")
            a("v_add_u32 v14, s13, v14")
            a(f"ds_write_b64 v14, v[{TMP}:{TMP+1}]")
            a(f"ds_write_b64 v14, v[{TMP+2}:{TMP+3}] offset:128")
            a("s_waitcnt lgkmcnt(0)")
            a("s_barrier")
            SR = TMP
        else:
            a("s_barrier")
            a("s_lshl_b32 s13, s8, 7")
            a(f"s_add_u32 s13, s13, {K3_STAT}")
            a("v_lshlrev_b32 v14, 3, v4")
            a("v_add_u32 v14, s13, v14")
            SR = TMP
            for n in range(4):
                a(f"ds_read_b64 v[{SR+2*n}:{SR+2*n+1}], v14 offset:{128*n}")
            a("s_waitcnt lgkmcnt(0)")
        W = FR
        a("v_lshrrev_b32 v14, 1, v3")
        a("v_lshlrev_b32 v14, 8, v14")
        a("v_lshl_add_u32 v14, v4, 4, v14")
        a("v_and_b32 v15, 1, v3")
        a("v_lshl_add_u32 v14, v15, 3, v14")
        a("s_lshl_b32 s13, s6, 3")
        a("s_add_u32 s13, s13, s8")
        a("s_mul_i32 s13, s13, 57344")
        a("s_mul_i32 s57, s7, 7")
        a("s_add_u32 s57, s57, s9")
        a("s_lshl_b32 s57, s57, 9")
        a("s_add_u32 s13, s13, s57")
        a(f"s_add_u32 s13, s13, {WS_HH}")
        a(f"s_mov_b32 s58, {hexf(GELU_C1)}")
        a(f"v_mov_b32 v15, {hexf(GELU_C0)}")
        k = 0
        for n in range(nN):
            m, rs = SR + 2 * n, SR + 2 * n + 1
            for t in range(nT):
                g, u = acc(0, t, n), acc(1, t, n)
                cg, cu = CWR + 4 * t, CWR + 4 * nT + 4 * t
                w = W + 16 * (k & 1); k += 1
                for r in range(4):
                    a(f"v_fma_f32 v{g+r}, -v{m}, v{cg+r}, v{g+r}")
                    a(f"v_fma_f32 v{u+r}, -v{m}, v{cu+r}, v{u+r}")
                for r in range(4):
                    a(f"v_mul_f32 v{g+r}, v{g+r}, v{rs}")
                    a(f"v_mul_f32 v{u+r}, v{u+r}, v{rs}")
                for r in range(2):
                    a(f"v_cvt_pk_bf16_f32 v{w+r}, v{g+2*r}, v{g+2*r+1}")
                    a(f"v_cvt_pk_bf16_f32 v{w+2+r}, v{u+2*r}, v{u+2*r+1}")
                for r in range(2):
                    unpack_bf16(a, w + r, g + 2 * r, g + 2 * r + 1)
                    unpack_bf16(a, w + 2 + r, u + 2 * r, u + 2 * r + 1)
                for r in range(4):
                    a(f"v_mul_f32 v{w+4+r}, v{g+r}, v{g+r}")
                for r in range(4):
                    a(f"v_fma_f32 v{w+4+r}, v{w+4+r}, s58, v15")
                for r in range(4):
                    a(f"v_mul_f32 v{w+4+r}, v{w+4+r}, v{g+r}")
                for r in range(4):
                    a(f"v_exp_f32 v{w+4+r}, v{w+4+r}")
                for r in range(4):
                    a(f"v_add_f32 v{w+4+r}, 1.0, v{w+4+r}")
                for r in range(4):
                    a(f"v_rcp_f32 v{w+4+r}, v{w+4+r}")
                for r in range(4):
                    a(f"v_mul_f32 v{g+r}, v{g+r}, v{w+4+r}")
                for r in range(2):
                    a(f"v_cvt_pk_bf16_f32 v{w+r}, v{g+2*r}, v{g+2*r+1}")
                for r in range(2):
                    unpack_bf16(a, w + r, g + 2 * r, g + 2 * r + 1)
                for r in range(4):
                    a(f"v_mul_f32 v{g+r}, v{g+r}, v{u+r}")
                for r in range(2):
                    a(f"v_cvt_pk_bf16_f32 v{w+8+r}, v{g+2*r}, v{g+2*r+1}")
                a(f"buffer_store_dwordx2 v[{w+8}:{w+9}], v14, s[68:71], s13 offen offset:{512*t}")
            if n < nN - 1:
                a("s_add_u32 s13, s13, 57344")
        a("s_endpgm")
        return TMP + 8

    n1 = path(False)
    a.label("K3_B")
    n2 = path(True)
    a.label("K3_END")
    a("s_endpgm")
    return name, max(n1, n2), 80, (256, 512, K3_LDS)


K4_LDS = 65536
K4_DEPTH = 6


def gen_k4(a):
    name = "k4_gemm2_kernel"
    kernel_header(a, name)
    load_kernargs(a)
    a("v_lshrrev_b32 v1, 6, v0")
    a("v_and_b32 v2, 63, v0")
    a("v_readfirstlane_b32 s3, v1")
    a("s_cmp_ge_u32 s2, 256")
    a("s_cbranch_scc1 K4_END")
    a("s_and_b32 s4, s2, 7")
    a("s_lshr_b32 s5, s2, 3")
    a("s_lshr_b32 s6, s4, 1")
    a("s_lshl_b32 s6, s6, 3")
    a("s_and_b32 s7, s5, 7")
    a("s_add_u32 s6, s6, s7")
    a("s_and_b32 s7, s4, 1")
    a("s_lshl_b32 s7, s7, 2")
    a("s_lshr_b32 s8, s5, 3")
    a("s_add_u32 s7, s7, s8")
    a("v_lshlrev_b32 v3, 4, v2")
    a("v_and_b32 v4, 15, v2")
    a("v_lshrrev_b32 v5, 4, v2")
    a("s_mul_i32 s8, s3, 14")
    a("s_mul_i32 s10, s7, 56")
    a("s_add_u32 s10, s10, s8")
    a("s_lshl_b32 s10, s10, 12")
    a(f"s_add_u32 s10, s10, {WS_WD}")
    a("s_mul_i32 s11, s6, 224")
    a("s_add_u32 s11, s11, s8")
    a("s_lshl_b32 s11, s11, 10")
    a(f"s_add_u32 s11, s11, {WS_HH}")
    for n in range(1, 4):
        a(f"v_add_u32 v{5+n}, {57344*n}, v3")
    a("s_waitcnt lgkmcnt(0)")
    srd(a, 68, 42, 43, WS_SIZE)
    srd(a, 44, 38, 39, 2048 * 1024)
    FR = 32

    def loads(i):
        b = FR + 32 * (i % K4_DEPTH)
        for mt in range(4):
            a(f"buffer_load_dwordx4 v[{b+4*mt}:{b+4*mt+3}], v3, s[68:71], s10 offen offset:{1024*mt}")
        for n in range(4):
            vo = 3 if n == 0 else 5 + n
            a(f"buffer_load_dwordx4 v[{b+16+4*n}:{b+16+4*n+3}], v{vo}, s[68:71], s11 offen")
        a("s_add_u32 s10, s10, 4096")
        a("s_add_u32 s11, s11, 1024")

    for i in range(K4_DEPTH):
        loads(i)
    a("v_lshlrev_b32 v9, 16, v5")
    a("v_lshl_add_u32 v9, v4, 1, v9")
    a("s_lshl_b32 s12, s7, 18")
    a("s_lshl_b32 s13, s6, 7")
    a("s_add_u32 s12, s12, s13")
    a("s_lshl_b32 s13, s3, 5")
    a("s_add_u32 s12, s12, s13")
    a(f"s_add_u32 s12, s12, {WS_HT}")
    NH = 16
    for it in range(14):
        rem_issued = min(14, it + K4_DEPTH)
        if it == 14 - K4_DEPTH:
            pass
        extra = NH if it > 14 - K4_DEPTH else 0
        a(f"s_waitcnt vmcnt({(rem_issued - it - 1) * 8 + extra})")
        b = FR + 32 * (it % K4_DEPTH)
        for mt in range(4):
            for n in range(4):
                d = 16 * mt + 4 * n
                c = "0" if it == 0 else f"a[{d}:{d+3}]"
                a(f"v_mfma_f32_16x16x32_bf16 a[{d}:{d+3}], v[{b+4*mt}:{b+4*mt+3}], v[{b+16+4*n}:{b+16+4*n+3}], {c}")
        if it + K4_DEPTH < 14:
            loads(it + K4_DEPTH)
        elif it == 14 - K4_DEPTH:
            for i in range(NH):
                a(f"buffer_load_ushort v{10+i}, v9, s[68:71], s12 offen")
                if i < NH - 1:
                    a("s_add_u32 s12, s12, 4096")
    a("s_lshl_b32 s13, s3, 14")
    a("v_add_u32 v6, s13, v3")
    for n in range(4):
        for mt in range(4):
            d = 16 * mt + 4 * n
            a(f"ds_write_b128 v6, a[{d}:{d+3}] offset:{4096*n+1024*mt}")
    a("s_waitcnt lgkmcnt(0)")
    a("s_barrier")
    a("s_lshl_b32 s13, s3, 12")
    a("v_add_u32 v6, s13, v3")
    for p in range(4):
        for mt in range(4):
            r = FR + 16 * p + 4 * mt
            a(f"ds_read_b128 v[{r}:{r+3}], v6 offset:{16384*p+1024*mt}")
    a("v_lshlrev_b32 v7, 10, v4")
    a("v_lshl_add_u32 v7, v5, 5, v7")
    a("s_lshl_b32 s12, s6, 16")
    a("s_lshl_b32 s13, s3, 14")
    a("s_add_u32 s12, s12, s13")
    a("s_lshl_b32 s13, s7, 7")
    a("s_add_u32 s12, s12, s13")
    a("s_waitcnt lgkmcnt(0)")
    for i in range(16):
        a(f"v_add_f32 v{FR+i}, v{FR+i}, v{FR+16+i}")
        a(f"v_add_f32 v{FR+32+i}, v{FR+32+i}, v{FR+48+i}")
    for i in range(16):
        a(f"v_add_f32 v{FR+i}, v{FR+i}, v{FR+32+i}")
    for i in range(8):
        a(f"v_cvt_pk_bf16_f32 v{FR+16+i}, v{FR+2*i}, v{FR+2*i+1}")
    for i in range(8):
        unpack_bf16(a, FR + 16 + i, FR + 2 * i, FR + 2 * i + 1)
    a("s_waitcnt vmcnt(0)")
    for i in range(16):
        a(f"v_lshlrev_b32 v{10+i}, 16, v{10+i}")
    for i in range(16):
        a(f"v_add_f32 v{FR+i}, v{FR+i}, v{10+i}")
    for i in range(8):
        a(f"v_cvt_pk_bf16_f32 v{FR+16+i}, v{FR+2*i}, v{FR+2*i+1}")
    a(f"buffer_store_dwordx4 v[{FR+16}:{FR+19}], v7, s[44:47], s12 offen")
    a(f"buffer_store_dwordx4 v[{FR+20}:{FR+23}], v7, s[44:47], s12 offen offset:16")
    a.label("K4_END")
    a("s_endpgm")
    nv = FR + 32 * K4_DEPTH
    return name, nv + 64, 80, (256, 256, K4_LDS), nv


def build(kernels):
    a = Asm()
    a.raw('.amdgcn_target "amdgcn-amd-amdhsa--gfx950"')
    a.raw(".text")
    metas = []
    for g in kernels:
        metas.append(g(a))
    hdr = ["; generated by dev/gen.py (hand-written generator)"]
    for m in metas:
        name, vg, sg, (grid, blk, lds) = m[:4]
        hdr.append(f"; @launch kernel={name} grid=({grid},1,1) block=({blk},1,1) lds={lds}")
    out = "\n".join(hdr) + "\n" + a.text()
    out += '.section .rodata,"a"\n'
    for m in metas:
        name, vg, sg = m[:3]
        acc = m[4] if len(m) > 4 else None
        out += kernel_desc(name, vg, sg, acc)
    return out


if __name__ == "__main__":
    out = build([gen_k1, gen_k2, gen_k3, gen_k4])
    open(sys.argv[1] if len(sys.argv) > 1 else "out.s", "w").write(out)
```
